```python
import torch

def _softmax(x, axis=-1):
    return torch.softmax(x, dim=axis)

def _gelu(x):
    return torch.nn.functional.gelu(x, approximate='tanh')

def _silu(x):
    return torch.nn.functional.silu(x)

def _sigmoid(x):
    return torch.sigmoid(x)

def _layernorm(x, axis=-1, eps=1e-05):
    m = x.mean(dim=axis, keepdim=True)
    v = x.var(dim=axis, keepdim=True, unbiased=False)
    return (x - m) / torch.sqrt(v + eps)

def _scatter_add(tgt, idx, src, axis=0):
    return tgt.clone().index_add_(axis, idx, src)

def _segment_sum(src, seg, n):
    out = torch.zeros((n,) + src.shape[1:], dtype=src.dtype)
    return out.index_add_(0, seg, src)

def _pad(x, pw):
    flat = tuple((v for pair in reversed(pw) for v in pair))
    return torch.nn.functional.pad(x, flat)
kernel_name = 'adaLN_cond__sliding_block_cached__glu_gated_glu__prompt'

def setup_inputs():

    _w = lambda a: (lambda t: t.to(torch.bfloat16) if t.is_floating_point() else t)(torch.as_tensor(a))

    def _A_setup():
        B, Sq, D = (1, 2048, 576)
        Hq, Hkv, Sk, Dh = (32, 16, 2048, 128)
        assert Hq % Hkv == 0, (Hq, Hkv)
        return {'x': _w((lambda *s: torch.randn(*s, dtype=torch.bfloat16) * 0.05)(B, Sq, D)), 'k_cache': _w((lambda *s: torch.randn(*s, dtype=torch.bfloat16) * 3.2)(B, Hkv, Sk, Dh)), 'v_cache': _w((lambda *s: torch.randn(*s, dtype=torch.bfloat16) * 0.4)(B, Hkv, Sk, Dh)), 'wq': _w((lambda *s: torch.randn(*s, dtype=torch.bfloat16) * 3.2)(D, Hq * Dh) * D ** (-0.5)), 'wo': _w((lambda *s: torch.randn(*s, dtype=torch.bfloat16) * 0.4)(Hq * Dh, D) * (Hq * Dh) ** (-0.5))}
    _A_in = _A_setup()

    def _B_setup():
        B, S, D, F = (1, 2048, 576, 4608)
        return {'x': _w((lambda *s: torch.randn(*s, dtype=torch.bfloat16) * 0.05)(B, S, D)), 'w_gate': _w((lambda *s: torch.randn(*s, dtype=torch.bfloat16) * 0.05)(D, F)), 'w_up': _w((lambda *s: torch.randn(*s, dtype=torch.bfloat16) * 0.05)(D, F)), 'w_down': _w((lambda *s: torch.randn(*s, dtype=torch.bfloat16) * 0.05)(F, D))}
    _B_in = _B_setup()
    return {'A_x': _A_in['x'], 'A_k_cache': _A_in['k_cache'], 'A_v_cache': _A_in['v_cache'], 'A_wq': _A_in['wq'], 'A_wo': _A_in['wo'], 'B_x': _B_in['x'], 'B_w_gate': _B_in['w_gate'], 'B_w_up': _B_in['w_up'], 'B_w_down': _B_in['w_down'], 'c': _w((lambda *s: torch.randn(*s, dtype=torch.bfloat16) * 0.1)(1, 576) * 8.0), 'w_mod': _w((lambda *s: torch.randn(*s, dtype=torch.bfloat16) * 0.1)(576, 6 * 576) * 576 ** (-0.5) * 8.0)}

def reference(A_x, A_k_cache, A_v_cache, A_wq, A_wo, B_x, B_w_gate, B_w_up, B_w_down, c, w_mod):

    def _A_ref(x, k_cache, v_cache, wq, wo):
        B, Sq, D = x.shape
        Hq, Dh = (32, 128)
        Hkv, Sk = (k_cache.shape[1], k_cache.shape[2])
        W = min(4096, max(256, Sk // 4))
        rep = Hq // Hkv
        q = (lambda x, *d: x.permute(*d))((x @ wq).reshape(B, Sq, Hq, Dh), 0, 2, 1, 3)
        k = (lambda x, n, axis: torch.repeat_interleave(x, n, dim=axis))(k_cache[:, :, Sk - W:, :], rep, axis=1)
        v = (lambda x, n, axis: torch.repeat_interleave(x, n, dim=axis))(v_cache[:, :, Sk - W:, :], rep, axis=1)
        scores = torch.einsum('bhqd,bhkd->bhqk', q, k) * Dh ** (-0.5)
        p = _softmax(scores, axis=-1)
        o = torch.einsum('bhqk,bhkd->bhqd', p, v)
        return (lambda x, *d: x.permute(*d))(o, 0, 2, 1, 3).reshape(B, Sq, Hq * Dh) @ wo

    def _B_ref(x, w_gate, w_up, w_down):
        g = torch.einsum('bsd,df->bsf', x, w_gate)
        u = torch.einsum('bsd,df->bsf', x, w_up)
        h = _sigmoid(g) * u
        return torch.einsum('bsf,fd->bsd', h, w_down)
    x = A_x
    mod = (_silu(c) @ w_mod).reshape(c.shape[0], 6, 1, -1)
    sa, ca, ga, sb, cb, gb = (mod[:, 0].clone(), mod[:, 1].clone(), mod[:, 2].clone(), mod[:, 3].clone(), mod[:, 4].clone(), mod[:, 5].clone())
    h = _layernorm(x, axis=-1) * (1 + ca) + sa
    x = x + ga * _A_ref(h, A_k_cache, A_v_cache, A_wq, A_wo)
    h = _layernorm(x, axis=-1) * (1 + cb) + sb
    x = x + gb * _B_ref(h, B_w_gate, B_w_up, B_w_down)
    return x
```

```python
import re
RX = re.compile(r'\b([vas])\[(\d+):(\d+)\]|\b([vas])(\d+)\b|\b(m0|vcc|exec|scc)\b')
def regs_of(s):
    out = []
    for m in RX.finditer(s):
        if m.group(1): out += [(m.group(1), i) for i in range(int(m.group(2)), int(m.group(3)) + 1)]
        elif m.group(4): out.append((m.group(4), int(m.group(5))))
        else: out.append((m.group(6), 0))
    return out
TRANS = ('v_exp_', 'v_log_', 'v_rcp_', 'v_rsq_', 'v_sqrt_', 'v_sin_', 'v_cos_')
class I:
    def __init__(s, t, prod=None, need=None):
        s.t = t.strip(); s.prod = prod; s.need = need if need is None or isinstance(need, (list, tuple)) else [need]
        s.pre_vm = None; s.pre_lg = None; s.nops = 0
        p = s.t.split(None, 1); op = s.op = p[0]
        ops = [o.strip() for o in p[1].split(',')] if len(p) > 1 else []
        R = [regs_of(o) for o in ops]
        flat = lambda l: set(x for r in l for x in r)
        s.rd = set(); s.wr = set(); s.srcc = set(); s.kind = 'x'
        if op.endswith(':') or op.startswith(';') or op.startswith('.'): s.kind = 'label'
        elif op == 'WAIT': s.kind = 'pseudo'
        elif op.startswith('v_mfma'):
            s.kind = 'mfma'; s.wr = flat(R[:1]); s.rd = flat(R[1:3]); s.srcc = flat(R[3:4]); s.passes = 8 if '32x32' in op else 4
        elif op.startswith('v_'):
            s.kind = 'valu'
            nd = 2 if ('_co_' in op or op.startswith('v_div_scale')) else 1
            s.wr = flat(R[:nd]); s.rd = flat(R[nd:])
            if op.startswith(('v_permlane', 'v_swap')): s.wr = flat(R); s.rd = flat(R)
            if op.startswith(('v_fmac', 'v_mac', 'v_dot2c', 'v_writelane')) or 'dpp' in op or 'quad_perm' in s.t or 'row_' in s.t: s.rd |= s.wr
            if op.startswith('v_cmpx'): s.wr |= {('exec', 0)}
            if op.startswith('v_cndmask') and len(ops) == 3: s.rd |= {('vcc', 0)}
        elif op.startswith('ds_'):
            s.kind = 'ds'
            if op.startswith(('ds_read', 'ds_bpermute', 'ds_permute', 'ds_swizzle')) or '_rtn' in op: s.wr = flat(R[:1]); s.rd = flat(R[1:])
            else: s.rd = flat(R)
        elif op.startswith(('buffer_', 'global_')):
            s.kind = 'vm'
            if s.t.endswith(' lds'): s.rd = flat(R) | {('m0', 0)}
            elif '_load' in op or ('atomic' in op and ' sc0' in s.t): s.wr = flat(R[:1]); s.rd = flat(R[1:]) | (flat(R[:1]) if 'atomic' in op else set())
            else: s.rd = flat(R)
            s.data = flat(R[:1]) if ('store' in op and ('x3' in op or 'x4' in op)) else set()
            if op.startswith('global_store'): s.data = flat(R[1:2]) if ('x3' in op or 'x4' in op) else set()
        elif op.startswith('s_'):
            s.kind = 'salu'
            if op.startswith(('s_load', 's_buffer_load', 's_memtime', 's_memrealtime')): s.kind = 'smem'; s.wr = flat(R[:1]); s.rd = flat(R[1:])
            elif op.startswith(('s_cmp', 's_bitcmp', 's_setpc', 's_cbranch', 's_branch', 's_waitcnt', 's_nop', 's_barrier', 's_endpgm', 's_setprio', 's_sleep')): s.rd = flat(R) if op.startswith(('s_cmp', 's_bitcmp', 's_setpc')) else set()
            else: s.wr = flat(R[:1]); s.rd = flat(R[1:])
            if 'saveexec' in op: s.wr |= {('exec', 0)}
        else: raise ValueError(t)
        s.trans = op.startswith(TRANS)
        s.dpp = s.kind == 'valu' and ('dpp' in op or 'quad_perm' in s.t or 'row_' in s.t)
        s.dot = op.startswith('v_dot')
def WAIT(*need): return I('WAIT', need=list(need))
def isv(r): return r[0] in 'va' and len(r[0]) == 1
def need_states(p, c):
    n = 0
    if p.kind == 'valu':
        vw = {r for r in p.wr if isv(r)}; sw = p.wr - vw
        if c.kind == 'mfma' and vw & (c.rd | c.srcc): n = max(n, 3 if p.dot else 2)
        if c.kind == 'valu':
            if (c.dpp or c.op.startswith('v_permlane')) and vw & c.rd: n = max(n, 2)
            if c.op.startswith(('v_readfirstlane', 'v_readlane')) and vw & c.rd: n = max(n, 1)
            if p.trans and vw & c.rd: n = max(n, 1)
            if p.dot and vw & (c.rd | c.wr): n = max(n, 3)
            if ('op_sel' in p.t or 'sdwa' in p.t) and vw & (c.rd | c.wr): n = max(n, 1)
            if sw & c.rd: n = max(n, 4 if c.op.startswith(('v_readlane', 'v_writelane', 'v_div_fmas')) else 2)
            if ('exec', 0) in sw: n = max(n, 5)
        if c.kind == 'vm' and sw & c.rd: n = max(n, 5)
        if c.kind in ('vm', 'ds') and p.dot and vw & c.rd: n = max(n, 3)
        if c.kind == 'mfma' and ('exec', 0) in sw: n = max(n, 4)
        if c.kind == 'salu' and c.op.startswith('s_cbranch_vcc') and ('vcc', 0) in sw: n = max(n, 5)
        if c.kind in ('salu', 'smem') and sw & c.rd: n = max(n, 2)
    elif p.kind == 'mfma':
        big = {8: 12, 4: 8}[p.passes]
        if c.kind == 'mfma':
            if p.wr & c.rd: n = max(n, big)
            if p.wr & c.srcc and not (p.wr == c.srcc and p.passes == c.passes): n = max(n, big - 2)
        elif c.kind in ('valu', 'vm', 'ds'):
            if p.wr & (c.rd | c.wr): n = max(n, big)
            if p.srcc & c.wr: n = max(n, {8: 7, 4: 3}[p.passes])
    elif p.kind == 'salu':
        if ('m0', 0) in p.wr and c.kind in ('vm', 'ds') and ('m0', 0) in c.rd: n = max(n, 1)
    elif p.kind == 'vm':
        if p.data & c.wr: n = max(n, 2)
    return n
def resolve(paths):
    for seq in paths:
        vq = []; lq = []
        for ins in seq:
            if ins.kind == 'label': continue
            touch = ins.rd | ins.wr | ins.srcc
            nv = nl = None
            for q, which in ((vq, 0), (lq, 1)):
                idx = -1
                for k, e in enumerate(q):
                    if (e.wr & touch) or (ins.need and e.prod is not None and e.prod in ins.need): idx = k
                if ins.need and (('VM0' in ins.need and which == 0) or ('LG0' in ins.need and which == 1)): idx = len(q) - 1
                if which == 1 and idx >= 0 and any(e.kind == 'smem' for e in q): idx = len(q) - 1
                if idx >= 0:
                    n = min(len(q) - 1 - idx, 63 if which == 0 else 15)
                    if which == 0: ins.pre_vm = n if ins.pre_vm is None else min(n, ins.pre_vm)
                    else: ins.pre_lg = n if ins.pre_lg is None else min(n, ins.pre_lg)
            if ins.pre_vm is not None: del vq[:max(0, len(vq) - ins.pre_vm)]
            if ins.pre_lg is not None: del lq[:max(0, len(lq) - ins.pre_lg)]
            if ins.kind == 'vm': vq.append(ins)
            elif ins.kind in ('ds', 'smem'): lq.append(ins)
    for seq in paths:
        hist = []
        for ins in seq:
            if ins.kind == 'label': continue
            w = 1 if (ins.pre_vm is not None or ins.pre_lg is not None) else 0
            d = w; req = 0
            for p, st in reversed(hist[-16:]):
                if p.kind != 'pseudo': req = max(req, need_states(p, ins) - d)
                d += st
                if d > 13: break
            ins.nops = max(ins.nops, req)
            own = 0 if ins.kind == 'pseudo' else (int(ins.t.split()[1]) + 1 if ins.op == 's_nop' else 1)
            if hist: hist[-1] = (hist[-1][0], hist[-1][1])
            hist.append((ins, own + w + ins.nops))
def text(seq):
    out = []
    for ins in seq:
        if ins.kind != 'label':
            w = []
            if ins.pre_vm is not None: w.append(f'vmcnt({ins.pre_vm})')
            if ins.pre_lg is not None: w.append(f'lgkmcnt({ins.pre_lg})')
            if w: out.append('s_waitcnt ' + ' '.join(w))
            if ins.nops > 0: out.append(f's_nop {ins.nops - 1}')
        if ins.kind != 'pseudo': out.append(ins.t)
    return '\n'.join(out)
class TL:
    def __init__(s): s.m = []; s.f = []
    @property
    def n(s): return len(s.m)
    def mf(s, ins): s.m.append(ins if isinstance(ins, I) else I(ins)); return len(s.m) - 1
    def at(s, p, ins, **kw):
        if isinstance(ins, (list, tuple)):
            for x in ins: s.at(p, x)
            return
        s.f.append((p, len(s.f), ins if isinstance(ins, I) else I(ins, **kw)))
    def spread(s, p0, p1, lst):
        n = len(lst)
        for k, x in enumerate(lst): s.at(p0 + (p1 - p0) * k / max(n, 1), x)
    def seq(s):
        f = sorted(s.f, key=lambda x: (x[0], x[1])); out = []; k = 0
        for i in range(-1, len(s.m)):
            if i >= 0: out.append(s.m[i])
            while k < len(f) and (f[k][0] < i + 1 or i == len(s.m) - 1): out.append(f[k][2]); k += 1
        return out
    def load(s):
        import collections
        c = collections.Counter()
        for p, _, ins in s.f:
            if ins.kind not in ('label', 'pseudo'): c[max(-1, min(int(p // 1), len(s.m) - 1))] += 8 if ins.trans else 4
        return [c[i] for i in range(-1, len(s.m))]
def L(txt):
    return [I(x) for x in txt.strip().split('\n') if x.strip() and not x.strip().startswith(';')]
```

```python
from core import *
import math
NAME = "adaLN_cond__sliding_block_cached__glu_gated_glu__prompt"
WS_MOD = 0
WS_SLAB1 = 1 << 20
SLAB = 73728
WS_X1 = 24 << 20
WS_H2 = 32 << 20
WS_SLAB2 = 40 << 20
WS_BYTES = 268435456
R1 = 74880; RING = 20480; MISC = R1 + 4 * RING
RU = 10
LOG2E = 1.4426950408889634
def f2h(x):
    import struct
    return '0x%08x' % struct.unpack('<I', struct.pack('<f', x))[0]
def vr(b, n=4): return f'v[{b}:{b+n-1}]'
def ar(b, n=4): return f'a[{b}:{b+n-1}]'
def srd(s, ptr, size): return L(f's_mov_b32 s{s}, s{ptr}\ns_mov_b32 s{s+1}, s{ptr+1}\ns_mov_b32 s{s+2}, {size}\ns_mov_b32 s{s+3}, 0x20000')
MF = 'v_mfma_f32_32x32x16_bf16'
X, Y, BOV, AR, TMP = 0, 64, 128, 160, 192
V_L16 = 224; V_L16B = 225
V_TR0 = 226; V_TR1 = 227
V_DA = 228
V_DB = 232
V_B0 = 236; V_B1 = 237; V_B2 = 238; V_B3 = 239
V_T8 = 240
V_KA0 = 241; V_KA1 = 242; V_VA0 = 243; V_VA1 = 244; V_KD = 245; V_VD = 246
V_LS = 247
V_OW = 249; V_T = 250
S_W, S_RB, S_SL, S_RING, S_OFF = 40, 41, 42, 43, 44
def breg(k, b):
    i = (k * 2 + b) * 4
    return ar(i) if i < 256 else vr(BOV + i - 256)
def common_addr(strideA):
    o = L(f'''v_and_b32 v1, 63, v0
v_lshrrev_b32 v2, 6, v0
v_readfirstlane_b32 s{S_W}, v2
v_lshlrev_b32 v{V_L16}, 4, v1
v_add_u32 v{V_L16B}, 4096, v{V_L16}
s_lshr_b32 s{S_RB}, s2, 3
s_and_b32 s{S_SL}, s2, 7
s_mul_i32 s{S_RING}, s{S_W}, {RING}
s_add_u32 s{S_RING}, s{S_RING}, {R1}
v_lshrrev_b32 v2, 3, v1
v_bfe_u32 v3, v1, 4, 1
v_lshlrev_b32 v3, 2, v3
v_and_b32 v4, 7, v1
v_xor_b32 v4, v4, v3
v_lshlrev_b32 v4, 4, v4
v_mul_u32_u24 v5, {strideA}, v2
v_add_u32 v{V_DA}, v5, v4
v_mul_u32_u24 v5, 1152, v2
v_add_u32 v{V_DB}, v5, v4''')
    for j in range(1, 4):
        o += L(f'v_add_u32 v{V_DA+j}, {j*(8*strideA-1024)}, v{V_DA}\nv_add_u32 v{V_DB+j}, {j*(8*1152-1024)}, v{V_DB}')
    o += L(f'''v_bfe_u32 v2, v1, 2, 2
v_lshlrev_b32 v6, 7, v2
v_lshrrev_b32 v2, 1, v2
v_lshl_add_u32 v6, v2, 6, v6
v_bfe_u32 v2, v1, 4, 1
v_lshl_add_u32 v8, v2, 5, v6
v_and_b32 v2, 1, v1
v_bfe_u32 v3, v1, 1, 1
v_lshlrev_b32 v2, 4, v2
v_lshl_add_u32 v9, v3, 3, v2
v_add_u32 v6, v8, v9
v_lshrrev_b32 v7, 5, v1
v_lshl_add_u32 v6, v7, 10, v6
v_add_u32 v{V_TR0}, s{S_RING}, v6
v_xor_b32 v2, 64, v6
v_add_u32 v{V_TR1}, s{S_RING}, v2
s_lshr_b32 s45, s{S_W}, 1
s_lshl_b32 s45, s45, 6
v_xor_b32 v{V_T8}, s45, v6''')
    return o
WS_PROF = 100 << 20
PROF = [False]
def stamp(i, real=False):
    if not PROF[0]: return []
    return [I(f's_mem{"real" if real else ""}time s[{70+2*i}:{71+2*i}]')]
def stamp_out(kidx, wavereg=None):
    if not PROF[0]: return []
    o = stamp(15, True) + [WAIT('LG0', 'VM0')] + L('v_mov_b32 v1, 0')
    for i in range(16): o += L(f'v_writelane_b32 v1, s{70+2*i}, {i}')
    o += L(f"""v_mbcnt_lo_u32_b32 v2, -1, 0
v_mbcnt_hi_u32_b32 v2, -1, v2
v_min_u32 v3, 16, v2
v_lshlrev_b32 v2, 2, v2
v_lshrrev_b32 v3, 4, v3
v_lshl_add_u32 v2, v3, 28, v2
s_lshl_b32 s70, s2, 10
s_lshl_b32 s71, s{wavereg}, 6
s_add_u32 s70, s70, s71
s_add_u32 s70, s70, {WS_PROF + kidx*256*1024}
buffer_store_dword v1, v2, s[36:39], s70 offen""")
    if PROF[0] == 2:
        o += L(f"""s_load_dwordx2 s[72:73], s[0:1], 96
s_or_b32 s71, s71, s2
s_cmp_lg_u32 s71, 0
s_cbranch_scc1 K{kidx}_END
s_add_u32 s72, s72, {512*(4-kidx)}
s_addc_u32 s73, s73, 0
s_mov_b32 s74, 256
s_mov_b32 s75, 0x20000
v_mov_b32 v4, s98
v_mov_b32 v5, s100
v_mov_b32 v6, 0
buffer_store_dwordx2 v[4:5], v6, s[72:75], 0 offen offset:{8*kidx}""")
    return o
class Stream:
    def __init__(s): s.groups = []; s.done = {}; s.u = 0
    def add(s, nunits, srdr, sbase, gstride, off0, vreg):
        assert nunits % 2 == 0
        u0 = 2 * len(s.groups)
        for g in range(nunits // 2): s.groups.append((srdr, sbase, off0 + g * gstride, vreg))
        return u0
    def issue(s, g):
        srdr, sbase, off, vreg = s.groups[g]
        o = [I(f's_add_u32 m0, s{S_RING}, {(g % (RU // 2)) * 4096}'), I(f's_add_u32 s{S_OFF}, s{sbase}, {off}')]
        for j in range(4):
            o.append(I(f'buffer_load_dwordx4 v{vreg+j}, s[{srdr}:{srdr+3}], s{S_OFF} offen offset:{j*1024} lds', prod=('u', 2 * g + j // 2)))
        return o
    def place(s, tl, g0, g1, gap=2.0):
        last = -99
        for g in range(g0, g1):
            p = s.done[2 * (g - RU // 2) + 1]; gp = gap
            if last > p + 0.4: p = last - 0.4; gp = 1.5
            ins = s.issue(g)
            tl.at(p + 0.5, ins[0]); tl.at(p + 0.6, ins[1])
            for j in range(4): tl.at(p + 1.1 + gp * j, ins[2 + j])
            last = p + 1.1 + gp * 3
        assert last <= s.done[2 * (g1 - 1 - RU // 2) + 1] + 8
class ARing:
    def __init__(s, base=AR, n=8, f=vr): s.b = base; s.n = n; s.i = 0; s.f = f
    def nxt(s):
        r = s.b + 4 * (s.i % s.n); s.i += 1; return r
def trpair(f, r, va, off, step, need=None):
    return [I(f'ds_read_b64_tr_b16 {f(r, 2)}, v{va} offset:{off}', need=need), I(f'ds_read_b64_tr_b16 {f(r+2, 2)}, v{va} offset:{off+step}', need=need)]
def gemm_pass(tl, st, u0, nk, acc, aring, jit=None, korder=None, la=5, minp=-1, head=0, tail=0):
    s0 = tl.n
    items = [(kk, t) for t in range(2) for kk in range(head)] + [(kk, t) for kk in range(head, nk - tail) for t in range(2)] + [(kk, t) for t in range(2) for kk in range(nk - tail, nk)]
    for kk, t in items:
        k = korder[kk] if korder else kk
        u = u0 + kk; base = tl.n
        r = aring.nxt()
        rd = trpair(vr, r, V_TR0 + t, (u % RU) * 2048, 512, need=[('u', u)])
        tl.at(max(minp, base - la + 0.3), rd[0]); tl.at(max(minp, base - la + 1.3), rd[1])
        for b in range(2):
            a = vr(acc + 16 * (2 * t + b), 16)
            tl.mf(f'{MF} {a}, {vr(r)}, {breg(kk, b)}, {a if kk else 0}')
        if jit and t == 0:
            for b in range(2): tl.at(max(minp, base - la - 1 + (1 if kk < head else 2) * b + 0.7), jit(kk, k, b))
        if t == 1: st.done[u] = base
    return s0
def pack_inplace(a):
    return [[I(f'v_cvt_pk_bf16_f32 v{a+8*o+j}, v{a+8*o+2*j}, v{a+8*o+2*j+1}') for j in range(4)] for o in range(2)]
def store_tiles(acc, sreg, mod, tiles=((0, 0), (0, 1), (1, 0), (1, 1))):
    o = []
    for t, b in tiles:
        a = acc + 16 * (2 * t + b); pk = pack_inplace(a)
        for oc in range(2):
            o += pk[oc]
            o.append(I(f'buffer_store_dwordx4 {vr(a+8*oc)}, v{V_L16+t}, s[36:39], s{sreg+b} offen offset:{oc*2048} {mod}'))
    return o
def proj_out(tl, st, u0, nk, jit, s_l8, srd_w, s_st, stmod, minp=-1, head=0, ar_=None):
    ar_ = ar_ or ARing()
    a0 = gemm_pass(tl, st, u0, nk, X, ar_, jit=jit, minp=minp, head=head)
    b0 = gemm_pass(tl, st, u0 + nk, nk, Y, ar_)
    tl.at(b0 - 0.9, [WAIT('jit'), I('s_barrier')] + stamp(8))
    c0 = tl.n
    p = st.done[u0 + 2 * nk - RU - 1] + 8
    for i in range((nk + 7) // 8):
        full = i < nk // 8
        sb = s_l8 if full else s_l8 + 2
        tl.at(p + 0.5, f's_add_u32 m0, s{sb+1}, {i*16384}'); tl.at(p + 0.6, f's_add_u32 s{S_OFF}, s{sb}, {i*128*1152}')
        for j in range(4 if full else 2):
            tl.at(p + 1.1 + j, f'buffer_load_dwordx4 v{V_DB+j}, s[{srd_w}:{srd_w+3}], s{S_OFF} offen offset:{j*1024} lds', prod='l8')
        p += 4
    tl.spread(b0 + 4.8, b0 + 4.8 + 40 * 2, store_tiles(X, s_st, stmod))
    tl.at(c0 - 1.6, stamp(9) + [WAIT('l8'), I('s_barrier')] + stamp(10))
    if nk > 32: tl.at(c0 - 5, f'v_add_u32 v{V_T}, 65536, v{V_T8}')
    for k in range(nk):
        r = ar_.nxt(); base = tl.n
        rd = trpair(vr, r, V_T8 if k < 32 else V_T, (k % 32) * 2048, 512)
        p = max(c0 - 1.5, base - 4 + 0.3)
        tl.at(p, rd[0]); tl.at(p + 0.2, rd[1])
        tl.mf(f'{MF} {vr(X, 16)}, {vr(r)}, {breg(k, 0)}, {vr(X, 16) if k else 0}')
    tl.spread(c0 + 3.8, tl.n - 0.1, store_tiles(Y, s_st + 2, stmod))
    tl.at(tl.n, stamp(11) + store_tiles(X, s_st + 4, stmod, tiles=((0, 0),)) + ([WAIT('VM0')] if PROF[0] else []) + stamp(12))
    return a0, b0, c0
def jit_frag(kk, k, b):
    return I(f'ds_read_b128 {breg(kk, b)}, v{(V_B0 if k < 32 else V_B2) + b} offset:{(k % 32) * 2048}', prod='jit')
def out_sregs(s_st, s_l8, slab, rowbase_expr):
    return L(f'''s_lshl_b32 s46, s2, 3
s_add_u32 s46, s46, s2
s_lshl_b32 s46, s46, 13
s_add_u32 s46, s46, {slab}
s_and_b32 s47, s{S_W}, 1
s_lshl_b32 s47, s47, 10
s_lshl_b32 s{s_st}, s{S_W}, 13
s_add_u32 s{s_st}, s{s_st}, s46
s_add_u32 s{s_st+1}, s{s_st}, 1024
s_sub_u32 s{s_st+1}, s{s_st+1}, s47
s_add_u32 s{s_st}, s{s_st}, s47
s_add_u32 s{s_st+2}, s{s_st}, 32768
s_add_u32 s{s_st+3}, s{s_st+1}, 32768
s_lshr_b32 s{s_st+4}, s{S_W}, 1
s_lshl_b32 s{s_st+4}, s{s_st+4}, 12
s_add_u32 s{s_st+4}, s{s_st+4}, s46
s_add_u32 s{s_st+4}, s{s_st+4}, s47
s_add_u32 s{s_st+4}, s{s_st+4}, 65536
s_mul_i32 s{s_l8}, s{S_W}, {32*1152}
s_mul_i32 s46, s{S_SL}, {rowbase_expr}
s_add_u32 s{s_l8}, s{s_l8}, s46
s_add_u32 s{s_l8}, s{s_l8}, 1024
s_lshl_b32 s{s_l8+1}, s{S_W}, 12
s_mul_i32 s{s_l8+2}, s{S_W}, {16*1152}
s_sub_u32 s{s_l8+2}, s{s_l8}, s{s_l8+2}
s_lshl_b32 s{s_l8+3}, s{S_W}, 11
v_add_u32 v{V_B0}, s47, v{V_L16}
v_xor_b32 v{V_B1}, 1024, v{V_B0}
v_add_u32 v{V_B2}, 65536, v{V_B0}
v_add_u32 v{V_B3}, 65536, v{V_B1}''')

KB = 0; KBUF = 2 * 8 * 1088; VB = 2 * KBUF; VBUF = 16384
SB = 128; NEGM = 192; QA = 0; KF = 64; VF = 96
S_KM, S_VM, S_KO, S_VO, S_CNT, S_FB, S_BIAS, S_KV0 = 50, 51, 52, 53, 54, 55, 56, 57
S_WQ, S_WO, S_ST, S_L8 = 58, 59, 60, 66
def kdma(par):
    o = []
    for j in range(4):
        o.append(I(f's_add_u32 m0, s{S_KM}, {par*KBUF + j*64}'))
        o.append(I(f'buffer_load_dwordx4 v{V_KD}, s[20:23], s{S_KO} offen offset:{j*1024} lds', prod='kv'))
    o.append(I(f's_add_u32 s{S_KO}, s{S_KO}, 8192'))
    return o
def vdma(par):
    o = [I(f's_add_u32 m0, s{S_VM}, {par*VBUF}')]
    for j in range(4): o.append(I(f'buffer_load_dwordx4 v{V_VD}, s[24:27], s{S_VO} offen offset:{j*1024} lds', prod='kv'))
    o.append(I(f's_add_u32 s{S_VO}, s{S_VO}, 8192'))
    return o
def kread(tile, ks): return I(f'ds_read_b128 {ar(KF + 4*ks)}, v{V_KA0 + (ks & 1)} offset:{(tile & 1)*KBUF + (ks >> 1)*64}')
def s_mfma(tile, ks, b, cinit):
    d = vr(SB + 32 * (tile & 1) + 16 * b, 16)
    return I(f'{MF} {d}, {ar(KF + 4*ks)}, {ar(QA + (ks*2+b)*4)}, {d if ks else cinit}')
def softmax_ops(tile, sub=False):
    g = []
    for oc in range(2):
        for b in range(2):
            a = SB + 32 * (tile & 1) + 16 * b + 8 * oc
            for j in range(8):
                x = []
                if sub: x.append(I(f'v_add_f32 v{a+j}, v{a+j}, v{NEGM+16*b}'))
                x.append(I(f'v_exp_f32 v{a+j}, v{a+j}'))
                g.append([x, I(f'v_add_f32 v{V_LS+b}, v{V_LS+b}, v{a+j}'), I(f'v_cvt_pk_bf16_f32 v{a+j//2}, v{a+j-1}, v{a+j}') if j & 1 else None])
    return g
def place_softmax(tl, tile, p0, step, sub=False):
    for n, (ex, ad, cv) in enumerate(softmax_ops(tile, sub)):
        p = p0 + n * step
        tl.at(p + 0.10 * step, ex); tl.at(p + 1.05 * step, ad)
        if cv: tl.at(p + 1.5 * step, cv)
def ln_rows(nchunk_regs):
    pass
def k1(opt):
    lab = 'attn_kernel'
    stmod = opt.get('stmod', '')
    P = L(f'''s_cmp_ge_u32 s2, 256
s_cbranch_scc1 K1_END
s_load_dwordx4 s[4:7], s[0:1], 0
s_load_dwordx4 s[8:11], s[0:1], 16
s_load_dwordx2 s[12:13], s[0:1], 32
s_load_dwordx2 s[14:15], s[0:1], 104''')
    if opt.get('pf2'): P += L('s_load_dwordx4 s[92:95], s[0:1], 48\ns_load_dwordx2 s[96:97], s[0:1], 64')
    P += stamp(14, True) + stamp(0) + common_addr(8192)
    P += srd(16, 4, 2048*1152) + srd(20, 6, 16*2048*256) + srd(24, 8, 16*2048*256) + srd(28, 10, 576*8192) + srd(32, 12, 4096*1152) + srd(36, 14, WS_BYTES)
    XR = 150
    P += L(f'''v_lshrrev_b32 v2, 3, v1
v_and_b32 v3, 7, v1
v_mul_u32_u24 v4, 1152, v2
v_lshl_add_u32 v4, v3, 4, v4
s_lshl_b32 s45, s{S_RB}, 2
s_add_u32 s45, s45, s{S_W}
s_mul_i32 s45, s45, {16*1152}
s_add_u32 s46, s45, {8*1152}
v_lshlrev_b32 v5, 4, v0''')
    for g in range(2):
        for i in range(9): P.append(I(f'buffer_load_dwordx4 {vr(XR + (g*9+i)*4)}, v4, s[16:19], s{45+g} offen offset:{i*128}'))
    P += L(f'''buffer_load_dwordx4 v[10:13], v5, s[36:39], 0 offen offset:{WS_MOD}
buffer_load_dwordx4 v[14:17], v5, s[36:39], 0 offen offset:{WS_MOD + 2304}''')
    if opt.get('pf'):
        P += L(f'''v_lshrrev_b32 v20, 4, v0
v_and_b32 v21, 15, v0
v_lshlrev_b32 v21, 6, v21
v_lshl_add_u32 v20, v20, 13, v21
v_lshlrev_b32 v21, 6, v0
s_mul_i32 s47, s{S_RB}, {18*8192}
s_lshl_b32 s48, s{S_SL}, 10
s_add_u32 s47, s47, s48
s_add_u32 s48, s47, {2*8192}
buffer_load_dword v222, v20, s[28:31], s47 offen
buffer_load_dword v222, v20, s[28:31], s48 offen
v_and_b32 v20, 127, v0
v_lshlrev_b32 v20, 6, v20
s_lshr_b32 s47, s{S_RB}, 4
s_lshl_b32 s48, s{S_SL}, 1
s_add_u32 s47, s47, s48
s_lshl_b32 s47, s47, 19
s_and_b32 s48, s{S_RB}, 15
s_lshl_b32 s48, s48, 13
s_add_u32 s47, s47, s48
s_add_u32 s47, s47, {1536*256}
buffer_load_dword v222, v20, s[20:23], s47 offen
buffer_load_dword v222, v20, s[24:27], s47 offen
s_mul_i32 s47, s{S_SL}, {512*1152}
s_mul_i32 s48, s{S_RB}, {16*1152}
s_add_u32 s47, s47, s48
buffer_load_dword v222, v21, s[32:35], s47 offen
buffer_load_dword v222, v21, s[32:35], s47 offen offset:2048''')
        for x in P:
            if x.t.startswith('buffer_load_dword v222'): x.wr = set()
    st = Stream()
    P += L(f's_lshl_b32 s{S_WQ}, s{S_SL}, 10\ns_lshl_b32 s45, s{S_W}, 8\ns_add_u32 s{S_WQ}, s{S_WQ}, s45')
    P += L(f's_mul_i32 s{S_WO}, s{S_SL}, {512*1152}\ns_lshl_b32 s45, s{S_W}, 7\ns_add_u32 s{S_WO}, s{S_WO}, s45')
    uq = st.add(36, 28, S_WQ, 32*8192, 0, V_DA); st.add(36, 28, S_WQ, 32*8192, 128, V_DA)
    for g in range(RU // 2): P += st.issue(g)
    P += L(f'''v_lshlrev_b32 v18, 4, v2
v_mul_u32_u24 v19, 1040, v3
v_add_u32 v18, v18, v19
s_lshl_b32 s45, s{S_W}, 8
v_add_u32 v18, s45, v18
v_lshlrev_b32 v19, 5, v3
v_add_u32 v19, {MISC}, v19
v_and_b32 v8, 31, v1
v_lshlrev_b32 v9, 4, v8
v_mul_u32_u24 v20, 1040, v7
v_add_u32 v{V_B0}, v9, v20
v_add_u32 v{V_B2}, {18*2080}, v{V_B0}
s_lshr_b32 s45, s{S_W}, 1
s_and_b32 s46, s{S_W}, 1
s_mul_i32 s47, s45, {8*1088}
v_lshrrev_b32 v9, 2, v8
v_mul_u32_u24 v9, 1088, v9
v_and_b32 v20, 3, v8
v_lshl_add_u32 v9, v20, 8, v9
v_xor_b32 v20, v20, v7
v_add_u32 v9, s47, v9
v_lshl_add_u32 v{V_KA0}, v20, 4, v9
v_xor_b32 v20, 2, v20
v_lshl_add_u32 v{V_KA1}, v20, 4, v9
s_mul_i32 s{S_KM}, s46, {4*1088}
s_add_u32 s{S_KM}, s{S_KM}, s47
s_lshl_b32 s47, s45, 13
s_add_u32 s47, s47, {VB}
v_add_u32 v{V_VA0}, s47, v6
v_xor_b32 v9, 64, v6
v_add_u32 v{V_VA1}, s47, v9
s_lshl_b32 s46, s46, 12
s_add_u32 s{S_VM}, s47, s46
s_lshl_b32 s{S_KV0}, s{S_SL}, 1
s_add_u32 s{S_KV0}, s{S_KV0}, s45
s_lshl_b32 s{S_KV0}, s{S_KV0}, 19
s_add_u32 s{S_KV0}, s{S_KV0}, s46
s_add_u32 s{S_KV0}, s{S_KV0}, {1536*256}
s_mov_b32 s{S_KO}, s{S_KV0}
s_mov_b32 s{S_VO}, s{S_KV0}
v_lshrrev_b32 v9, 4, v1
v_and_b32 v20, 15, v1
v_xor_b32 v20, v20, v9
v_lshlrev_b32 v20, 4, v20
v_lshl_add_u32 v{V_KD}, v9, 8, v20
v_and_b32 v9, 3, v2
v_lshlrev_b32 v20, 8, v9
v_lshl_add_u32 v20, v7, 7, v20
v_lshrrev_b32 v9, 1, v9
v_lshlrev_b32 v9, 2, v9
v_xor_b32 v9, v9, v3
v_lshl_add_u32 v{V_VD}, v9, 4, v20
s_lshl_b32 s45, s{S_W}, 14
v_add_u32 v{V_OW}, s45, v{V_L16}
s_mov_b32 s{S_FB}, 0
s_mov_b32 s{S_BIAS}, {f2h(-40.0)}
v_mov_b32 v{V_T+4}, v18
v_mov_b32 v{V_T+5}, v19''')
    qs = LOG2E / math.sqrt(128.0)
    P += L(f's_mov_b32 s45, {f2h(qs)}\nv_add_u32 v5, {MISC}, v5\nv_cmp_gt_u32 vcc, 144, v0')
    for j in range(4): P += L(f'v_mul_f32 v{10+j}, s45, v{10+j}\nv_fma_f32 v{14+j}, v{14+j}, s45, s45')
    P += L(f's_and_saveexec_b64 s[46:47], vcc\nds_write_b128 v5, v[10:13] offset:2304\nds_write_b128 v5, v[14:17]\ns_mov_b64 exec, s[46:47]')
    HW, PA = V_T + 4, V_T + 5
    P += stamp(1)
    for g in range(2):
        U = 72 * g; sm = 144 + 2 * g
        for i in range(36):
            r = XR + g * 36 + i
            P += L(f'v_lshlrev_b32 v{U+2*i}, 16, v{r}\nv_and_b32 v{U+2*i+1}, 0xffff0000, v{r}')
            P += L(f'v_pk_add_f32 {vr(sm,2)}, {vr(sm,2)}, {vr(U+2*i,2)}' if i else f'v_pk_add_f32 {vr(sm,2)}, {vr(U,2)}, 0')
    def red8(regs):
        o = []
        for r in regs: o += L(f'v_add_f32 v{r}, v{r}, v{r+1}')
        for d in ('quad_perm:[1,0,3,2]', 'quad_perm:[2,3,0,1]', 'row_half_mirror'):
            for r in regs: o += L(f'v_add_f32_dpp v{r}, v{r}, v{r} {d} row_mask:0xf bank_mask:0xf')
        return o
    P += red8([144, 146])
    P += L(f'v_mul_f32 v144, {f2h(-1/576)}, v144\nv_mul_f32 v146, {f2h(-1/576)}, v146')
    for g in range(2):
        U = 72 * g; sm = 144 + 2 * g; vv = 150 + 2 * g
        for i in range(36):
            P += L(f'v_pk_add_f32 {vr(U+2*i,2)}, {vr(U+2*i,2)}, {vr(sm,2)} op_sel_hi:[1,0]')
        for i in range(36):
            P += L(f'v_pk_fma_f32 {vr(vv,2)}, {vr(U+2*i,2)}, {vr(U+2*i,2)}, {vr(vv,2) if i else 0}')
    P += red8([150, 152])
    P += L(f's_mov_b32 s45, {f2h(1/576)}\nv_mov_b32 v154, {f2h(1e-5)}\nv_fma_f32 v150, v150, s45, v154\nv_fma_f32 v152, v152, s45, v154\nv_rsq_f32 v150, v150\nv_rsq_f32 v152, v152')
    P += [WAIT('LG0'), I('s_barrier')]
    def prm(i): return 160 + 16 * (i % 4)
    def ldp(i): return L('\n'.join(f'ds_read_b128 {vr(prm(i) + 4*j)}, v{PA} offset:{i*256 + (j & 1)*16 + (j >> 1)*2304}' for j in range(4)))
    for i in range(3): P += ldp(i)
    for g in range(2):
        for i in range(36): P += L(f'v_pk_mul_f32 {vr(72*g+2*i,2)}, {vr(72*g+2*i,2)}, {vr(150+2*g,2)} op_sel_hi:[1,0]')
    P += L(f'v_add_u32 v156, {8*8320}, v{HW}')
    for i in range(9):
        if i + 3 < 9: P += ldp(i + 3)
        for g in range(2):
            U = 72 * g + 8 * i
            for j in range(4): P += L(f'v_pk_fma_f32 {vr(U+2*j,2)}, {vr(U+2*j,2)}, {vr(prm(i)+2*j,2)}, {vr(prm(i)+8+2*j,2)}')
            for j in range(4): P += L(f'v_cvt_pk_bf16_f32 v{U+j}, v{U+2*j}, v{U+2*j+1}')
            P += L(f'ds_write_b128 v{HW if i < 8 else 156}, {vr(U)} offset:{(i % 8)*8320 + g*128}')
    P += [WAIT('LG0'), I('s_barrier')]
    P += stamp(2)
    tl = TL(); ar_ = ARing()
    def jit_h(kk, k, b): return I(f'ds_read_b128 {breg(kk, b)}, v{V_B0 if k < 18 else V_B2} offset:{(k % 18)*2080 + b*512}', prod='jit')
    gemm_pass(tl, st, uq, 36, X, ar_, jit=jit_h)
    q1 = gemm_pass(tl, st, uq + 36, 36, Y, ar_)
    st.place(tl, RU // 2, 36)
    tl.at(q1 - 0.9, [WAIT('jit'), I('s_barrier')] + stamp(3))
    def qconv(acc, qb):
        o = []
        for t in range(2):
            for oc in range(2):
                for b in range(2):
                    a = acc + 16 * (2*t + b)
                    o += pack_inplace(a)[oc]
                    o += [I(f'v_accvgpr_write_b32 a{qb + ((2*t+oc)*2+b)*4 + j}, v{a+8*oc+j}') for j in range(4)]
        return o
    tl.spread(q1 + 20.8, q1 + 84.8, qconv(X, QA))
    p = st.done[72 - RU - 1] + 8
    tl.spread(p + 0.5, p + 24.5, kdma(0) + kdma(1) + vdma(0))
    tl.at(q1 + 90.8, out_sregs(S_ST, S_L8, WS_SLAB1, 512*1152))
    tl.at(q1 + 91, L(f'v_mov_b32 v{V_LS}, 0\nv_mov_b32 v{V_LS+1}, 0'))
    if opt.get('pf2'):
        tl.at(q1 + 112.95, L(f'''s_movk_i32 s10, 1152
s_cmp_eq_u32 s{S_W}, 0
s_cselect_b32 s16, s92, s94
s_cselect_b32 s17, s93, s95
s_cmp_ge_u32 s{S_W}, 2
s_cselect_b32 s16, s96, s16
s_cselect_b32 s17, s97, s17
s_mov_b32 s18, {576*9216}
s_mov_b32 s19, 0x20000
s_cselect_b32 s9, s10, 9216
s_cselect_b32 s8, {576*1152}, s10
s_mul_i32 s8, s8, s{S_SL}
s_mul_i32 s10, s{S_RB}, 18
s_mul_i32 s10, s10, s9
s_add_u32 s8, s8, s10
v_lshrrev_b32 v{V_T}, 4, v{V_L16}
v_min_u32 v{V_T}, 53, v{V_T}
v_mul_u32_u24 v{V_T+1}, 3641, v{V_T}
v_lshrrev_b32 v{V_T+1}, 16, v{V_T+1}
v_mul_u32_u24 v{V_T+2}, 18, v{V_T+1}
v_sub_u32 v{V_T}, v{V_T}, v{V_T+2}
v_lshlrev_b32 v{V_T}, 6, v{V_T}
v_mul_u32_u24 v{V_T+1}, s9, v{V_T+1}
v_add_u32 v{V_DA}, v{V_T}, v{V_T+1}
s_mul_i32 s9, s9, 3'''))
    e = tl.n
    tl.at(e - 1.6, stamp(4) + [WAIT('kv'), I('s_barrier')])
    for ks in range(8):
        tl.at(max(e - 1.5, e + 2*ks - 4 + 0.3), kread(0, ks))
        for b in range(2): tl.mf(s_mfma(0, ks, b, 0))
    tl.spread(e + 1.8, e + 7.9, qconv(Y, QA + 32))
    st2 = Stream()
    uo = st2.add(32, 32, S_WO, 32*1152, 0, V_DB); st2.add(32, 32, S_WO, 32*1152, 512, V_DB)
    pre = []
    for g in range(RU // 2): pre += st2.issue(g)
    tl.spread(e + 8.5, e + 15.9, pre)
    def maxtree(first):
        o = []
        for b in range(2):
            a = SB + 16 * b; m = V_T + b
            o += L(f'v_max_f32 v{m}, v{a}, v{a+1}' if first else f'v_max3_f32 v{m}, v{a}, v{a+1}, v{m}')
            for j in range(1, 8): o += L(f'v_max3_f32 v{m}, v{a+2*j}, v{a+2*j+1}, v{m}')
        return o
    tl.at(tl.n, maxtree(True))
    seg1 = P + tl.seq()
    tl = TL()
    h = [I('HAVE_MAX:'), WAIT('kv', 'LG0'), I('s_barrier')] + [kread(1, 0), kread(1, 1)]
    for b in range(2): h += L(f'v_mov_b32 v{V_T+2+b}, v{V_T+b}')
    for b in range(2): h += L(f'v_permlane32_swap_b32 v{V_T+b}, v{V_T+2+b}')
    for b in range(2): h += L(f'v_max_f32 v{V_T+b}, v{V_T+b}, v{V_T+2+b}\nv_sub_f32 v{NEGM+16*b}, s{S_BIAS}, v{V_T+b}')
    for b in range(2): h += L('\n'.join(f'v_mov_b32 v{NEGM+16*b+j}, v{NEGM+16*b}' for j in range(1, 16)))
    h += L(f's_mov_b32 s{S_CNT}, 0') + stamp(5)
    tl.at(-1, h)
    marks = {}
    for i in range(16):
        base = tl.n; marks[i] = I(f'; it{i}'); tl.at(base - 0.001, marks[i])
        pv = base + (16 if i < 15 else 0)
        if i < 15:
            for ks in range(8):
                if i or ks > 1: tl.at(base + 2*ks - 3 + (0.6 if ks else 0.5), kread(i + 1, ks))
                for b in range(2): tl.mf(s_mfma(i + 1, ks, b, vr(NEGM + 16*b, 16)))
        for ks in range(2):
            for dt in range(4):
                f = VF + 4 * (4*ks + dt); s = tl.n
                rd = trpair(ar, f, V_VA0 + (dt & 1), (i & 1)*VBUF + ks*4096 + (dt >> 1)*512, 2048)
                lo = base - 2.5
                tl.at(max(lo, s - 4 + 0.6), rd[0]); tl.at(max(lo, s - 3 + 0.6), rd[1])
                for b in range(2):
                    o = vr(16 * (2*dt + b), 16)
                    tl.mf(f'{MF} {o}, {ar(f)}, {vr(SB + 32*(i & 1) + 16*b + 8*ks)}, {o if (i or ks) else 0}')
        if i == 0: place_softmax(tl, 0, -0.5, 0.55, sub=True)
        if i < 14: place_softmax(tl, i + 1, base + 18, 1.0)
        elif i == 14: place_softmax(tl, 15, base + 18, 0.62)
        if i < 15: tl.at(tl.n - 2.99, [WAIT('kv', 'LG0'), I('s_barrier')])
        d = (kdma((i + 2) & 1) if i + 2 <= 15 else []) + (vdma((i + 1) & 1) if i + 1 <= 15 else [])
        tl.spread(base + 0.8, base + 0.8 + len(d), d)
        if opt.get('pf2') and i & 1 and i < 13:
            x = L(f'buffer_load_dword v{V_DA+1}, v{V_DA}, s[16:19], s8 offen\ns_add_u32 s8, s8, s9'); x[0].wr = set()
            tl.at(base + 16.9, x)
        if i & 1 == 0: tl.at(tl.n - 1.2, L(f's_add_u32 s{S_CNT}, s{S_CNT}, 1\ns_cmp_lt_u32 s{S_CNT}, 7'))
    e = tl.n
    c = []
    for b in range(2): c += L(f'v_mov_b32 v{V_T+b}, v{V_LS+b}')
    for b in range(2): c += L(f'v_permlane32_swap_b32 v{V_LS+b}, v{V_T+b}')
    for b in range(2): c += L(f'v_add_f32 v{V_LS+b}, v{V_LS+b}, v{V_T+b}')
    c += L(f'''v_cmp_nle_f32 vcc, v{V_LS}, v{V_T+2}
v_cmp_nle_f32 s[46:47], v{V_LS+1}, v{V_T+2}
v_rcp_f32 v{V_T}, v{V_LS}
v_rcp_f32 v{V_T+2}, v{V_LS+1}
s_or_b64 s[46:47], s[46:47], vcc
s_cselect_b32 s45, 1, 0
s_lshl_b32 s46, s{S_W}, 2
s_add_u32 s46, s46, {MISC}
v_mov_b32 v{V_T+4}, s45
v_mov_b32 v{V_T+5}, s46
ds_write_b32 v{V_T+5}, v{V_T+4}
v_mov_b32 v{V_T+5}, {MISC}''')
    tl.at(e - 9, f'v_mov_b32 v{V_T+2}, {f2h(2.0**60)}')
    tl.spread(e - 8, e - 3, c)
    tl.at(e - 1.9, [WAIT('LG0'), I('s_barrier'), I(f'ds_read_b128 {vr(NEGM)}, v{V_T+5}')])
    fin = L(f'v_or_b32 v{NEGM}, v{NEGM}, v{NEGM+1}\nv_or3_b32 v{NEGM}, v{NEGM}, v{NEGM+2}, v{NEGM+3}\nv_readfirstlane_b32 s45, v{NEGM}\ns_cmp_gt_u32 s45, s{S_FB}\ns_cbranch_scc1 FALLBACK')
    tl.at(e, stamp(6) + fin)
    sq = tl.seq()
    ix = {i: sq.index(marks[i]) for i in marks}
    body = sq[ix[1]:ix[3]]
    tx = lambda l: [x.t for x in l if x.kind != 'label']
    for i in range(3, 13, 2): assert tx(sq[ix[i]:ix[i+2]]) == tx(body), i
    segA = sq[:ix[1]]; segB = [I('ATT_LOOP:')] + body + [I('s_cbranch_scc1 ATT_LOOP')]; segC = sq[ix[13]:]
    tl = TL(); o = []
    for dt in range(4):
        for b in range(2):
            a = 16 * (2*dt + b)
            o += L('\n'.join(f'v_pk_mul_f32 {vr(a+2*j,2)}, {vr(a+2*j,2)}, {vr(V_T+2*b,2)} op_sel_hi:[1,0]' for j in range(8)))
            for oc in range(2): o += pack_inplace(a)[oc] + L(f'ds_write_b128 v{V_OW}, {vr(a+8*oc)} offset:{((2*dt+oc)*2+b)*1024}')
    tl.at(-1, o + [WAIT('LG0'), I('s_barrier')] + stamp(7))
    proj_out(tl, st2, uo, 32, jit_frag, S_L8, 32, S_ST, stmod, minp=-0.5)
    st2.place(tl, RU // 2, 32)
    segD = tl.seq() + stamp_out(1, S_W) + [I('K1_END:'), I('s_endpgm')]
    F0 = L(f'''FALLBACK:
s_mov_b32 s{S_FB}, 1
s_mov_b32 s{S_BIAS}, 0
s_mov_b32 s{S_CNT}, 0
s_add_u32 s{S_KO}, s{S_KV0}, {15*8192}
v_mov_b32 v{V_T}, 0xff800000
v_mov_b32 v{V_T+1}, 0xff800000
v_mov_b32 v{V_LS}, 0
v_mov_b32 v{V_LS+1}, 0''')
    F1 = [I('FB_LOOP:'), WAIT('LG0'), I('s_barrier')] + kdma(0) + L(f's_sub_u32 s{S_KO}, s{S_KO}, 16384') + [WAIT('kv'), I('s_barrier')]
    F1 += [kread(0, ks) for ks in range(8)] + [s_mfma(0, ks, b, 0) for ks in range(8) for b in range(2)] + maxtree(False)
    F1 += L(f's_add_u32 s{S_CNT}, s{S_CNT}, 1\ns_cmp_lt_u32 s{S_CNT}, 16\ns_cbranch_scc1 FB_LOOP')
    F2 = L(f's_add_u32 s{S_KO}, s{S_KV0}, 8192\ns_mov_b32 s{S_VO}, s{S_KV0}') + kdma(1) + vdma(0) + L('s_branch HAVE_MAX')
    main = seg1 + segA + segB + segB + segB + segC
    resolve([main + segD, main + F0 + F1 + F1 + F2 + segA + segB + segB + segC + segD])
    return lab, text(seg1 + segA + segB + segC + segD + F0 + F1 + F2), dict(grid=256, block=256, lds=163840, vgpr=512, acc=256)
```

```python
from gen1 import *
DPP = 'row_mask:0xf bank_mask:0xf'
def unpack(dst, src, n=4):
    o = []
    for j in range(n): o += L(f'v_lshlrev_b32 v{dst+2*j}, 16, v{src+j}\nv_and_b32 v{dst+2*j+1}, 0xffff0000, v{src+j}')
    return o
def k0(opt):
    P = L(f'''s_load_dwordx4 s[4:7], s[0:1], 72
s_load_dwordx2 s[14:15], s[0:1], 104
s_and_b32 s20, s2, 7
s_lshr_b32 s21, s2, 5
s_lshl_b32 s21, s21, 3
s_add_u32 s20, s20, s21
s_cmp_ge_u32 s20, 54
s_cbranch_scc1 K0_END
s_bfe_u32 s21, s2, 0x20003
s_lshl_b32 s20, s20, 2
s_add_u32 s20, s20, s21
s_lshl_b32 s21, s20, 5
s_add_u32 s22, s21, {288*6912}
v_lshrrev_b32 v1, 1, v0
v_and_b32 v2, 1, v0
v_mul_u32_u24 v3, 6912, v1
v_lshl_add_u32 v3, v2, 4, v3
v_lshlrev_b32 v4, 1, v1''')
    P += stamp(14, True) + srd(8, 4, 1152) + srd(16, 6, 576*6912) + srd(36, 14, WS_BYTES)
    P += L(f'''buffer_load_ushort v5, v4, s[8:11], 0 offen
buffer_load_ushort v6, v4, s[8:11], 0 offen offset:576
buffer_load_dwordx4 v[8:11], v3, s[16:19], s21 offen
buffer_load_dwordx4 v[12:15], v3, s[16:19], s22 offen
v_lshrrev_b32 v40, 6, v0
v_lshlrev_b32 v40, 6, v40
v_lshl_add_u32 v40, v2, 5, v40
v_bfe_u32 v41, v0, 4, 1
v_lshl_add_u32 v40, v41, 3, v40
v_bfe_u32 v41, v0, 5, 1
v_lshl_add_u32 v40, v41, 2, v40
v_and_b32 v41, 15, v0
v_lshlrev_b32 v41, 2, v41
s_lshl_b32 s23, s20, 6
v_lshlrev_b32 v5, 16, v5
v_lshlrev_b32 v6, 16, v6
v_mul_f32 v16, {f2h(-LOG2E)}, v5
v_mul_f32 v17, {f2h(-LOG2E)}, v6
v_exp_f32 v16, v16
v_exp_f32 v17, v17
v_add_f32 v16, 1.0, v16
v_add_f32 v17, 1.0, v17
v_rcp_f32 v16, v16
v_rcp_f32 v17, v17
v_mul_f32 v16, v16, v5
v_mul_f32 v17, v17, v6
v_cvt_pk_bf16_f32 v16, v16, v17
v_and_b32 v17, 0xffff0000, v16
v_lshlrev_b32 v16, 16, v16''')
    P += unpack(20, 8) + unpack(28, 12)
    for j in range(8): P += L(f'v_mul_f32 v{20+j}, v16, v{20+j}\nv_fmac_f32 v{20+j}, v17, v{28+j}')
    for i in range(4): P += L(f'v_permlane32_swap_b32 v{20+2*i}, v{21+2*i}')
    for i in range(4): P += L(f'v_add_f32 v{20+2*i}, v{20+2*i}, v{21+2*i}')
    for m in range(2): P += L(f'v_permlane16_swap_b32 v{20+4*m}, v{22+4*m}')
    for m in range(2): P += L(f'v_add_f32 v{20+4*m}, v{20+4*m}, v{22+4*m}')
    for d in ('quad_perm:[2,3,0,1]', 'row_ror:4', 'row_ror:8'):
        for r in (20, 24): P += L(f'v_add_f32_dpp v{r}, v{r}, v{r} {d} {DPP}')
    P += L('ds_write_b32 v40, v20\nds_write_b32 v40, v24 offset:16\nv_readfirstlane_b32 s24, v0')
    P += [WAIT('LG0'), I('s_barrier')] + L('s_cmp_lg_u32 s24, 0\ns_cbranch_scc1 K0_END')
    for w in range(9): P += L(f'ds_read_b32 v{20+w}, v41 offset:{w*64}')
    for a, b in ((20, 21), (22, 23), (24, 25), (26, 27), (20, 22), (24, 26), (20, 24), (20, 28)): P += L(f'v_add_f32 v{a}, v{a}, v{b}')
    P += L(f'v_cvt_pk_bf16_f32 v20, v20, v20\nv_lshlrev_b32 v20, 16, v20\nbuffer_store_dword v20, v41, s[36:39], s23 offen offset:{WS_MOD}') + stamp_out(0, 24) + L('K0_END:\ns_endpgm')
    resolve([P])
    return 'mod_kernel', text(P), dict(grid=224, block=576, lds=1024, vgpr=64, acc=64)
def red_head(slab, end):
    P = L(f'''s_cmp_ge_u32 s2, 256
s_cbranch_scc1 {end}
s_load_dwordx2 s[4:5], s[0:1], 0
s_load_dwordx2 s[6:7], s[0:1], 88
s_load_dwordx2 s[14:15], s[0:1], 104
s_lshr_b32 s20, s2, 3
s_and_b32 s21, s2, 7
s_lshr_b32 s22, s21, 2
s_lshl_b32 s22, s22, 10
s_and_b32 s23, s21, 3
s_lshl_b32 s23, s23, 7
s_add_u32 s22, s22, s23
s_mul_i32 s23, s20, {8*SLAB}
s_add_u32 s23, s23, s22
s_add_u32 s24, s23, {slab}
s_mul_i32 s33, s20, {SLAB}
s_add_u32 s33, s33, s22
s_add_u32 s33, s33, {WS_H2}
s_mul_i32 s32, s2, {8*1152}
s_add_u32 s34, s32, {WS_X1}
v_lshrrev_b32 v1, 3, v0
v_and_b32 v6, 7, v0
v_lshrrev_b32 v2, 1, v1
v_lshlrev_b32 v2, 11, v2
v_and_b32 v3, 1, v1
v_lshl_add_u32 v2, v3, 9, v2
v_lshl_add_u32 v2, v6, 4, v2
v_mul_u32_u24 v3, 1152, v6
v_lshl_add_u32 v3, v1, 4, v3
v_lshlrev_b32 v4, 5, v1
v_lshlrev_b32 v5, 4, v0''')
    for i in range(1, 8): P += L(f's_add_u32 s{24+i}, s24, {i*SLAB}')
    if PROF[0]: P += stamp(14, True) + L('v_lshrrev_b32 v9, 6, v0\nv_readfirstlane_b32 s40, v9')
    P += srd(36, 14, WS_BYTES)
    for i in range(8): P += L(f'buffer_load_dwordx4 {vr(16+4*i)}, v2, s[36:39], s{24+i} offen')
    return P
def red_sum():
    P = unpack(48, 16)
    for i in range(1, 8):
        P += unpack(56, 16 + 4*i)
        for j in range(4): P += L(f'v_pk_add_f32 {vr(48+2*j,2)}, {vr(48+2*j,2)}, {vr(56+2*j,2)}')
    return P
def prm(dst, idx): return L(f'buffer_load_dwordx4 {vr(dst)}, v4, s[36:39], s35 offen offset:{idx*2304}\nbuffer_load_dwordx4 {vr(dst+4)}, v4, s[36:39], s35 offen offset:{idx*2304+16}')
def k2(opt):
    P = red_head(WS_SLAB1, 'K2_END') + srd(8, 4, 2048*1152)
    P += L(f'buffer_load_dwordx4 v[12:15], v3, s[8:11], s32 offen\ns_mov_b32 s35, {WS_MOD + 2*2304}')
    P += prm(64, 0) + prm(72, 1) + L(f's_mov_b32 s35, {WS_MOD + 4*2304}') + prm(80, 0)
    P += L(f'v_lshrrev_b32 v7, 6, v0\nv_lshlrev_b32 v7, 6, v7\nv_lshl_add_u32 v7, v6, 3, v7\nv_lshlrev_b32 v8, 3, v6')
    P += red_sum() + unpack(56, 12)
    for j in range(4): P += L(f'v_pk_fma_f32 {vr(48+2*j,2)}, {vr(48+2*j,2)}, {vr(64+2*j,2)}, {vr(56+2*j,2)}')
    for j in range(4): P += L(f'v_cvt_pk_bf16_f32 v{12+j}, v{48+2*j}, v{49+2*j}')
    P += L('buffer_store_dwordx4 v[12:15], v5, s[36:39], s34 offen') + unpack(48, 12)
    def red(r):
        return L(f'''v_add_f32_dpp v{r}, v{r}, v{r} row_ror:8 {DPP}
v_mov_b32 v9, v{r}
v_permlane16_swap_b32 v{r}, v9
v_add_f32 v{r}, v{r}, v9
v_mov_b32 v9, v{r}
v_permlane32_swap_b32 v{r}, v9
v_add_f32 v{r}, v{r}, v9''')
    P += L('v_pk_add_f32 v[56:57], v[48:49], v[50:51]\nv_pk_add_f32 v[58:59], v[52:53], v[54:55]\nv_pk_add_f32 v[56:57], v[56:57], v[58:59]\nv_add_f32 v10, v56, v57')
    P += red(10) + L(f'v_mul_f32 v10, {f2h(1/64)}, v10')
    for j in range(8): P += L(f'v_sub_f32 v{56+j}, v{48+j}, v10')
    P += L('v_mul_f32 v11, v56, v56')
    for j in range(1, 8): P += L(f'v_fmac_f32 v11, v{56+j}, v{56+j}')
    P += red(11) + L('ds_write_b64 v7, v[10:11]')
    P += L(f's_mov_b32 s35, {f2h(LOG2E)}')
    for j in range(8): P += L(f'v_mul_f32 v{72+j}, s35, v{72+j}\nv_fma_f32 v{80+j}, v{80+j}, s35, s35')
    P += [WAIT('LG0'), I('s_barrier')]
    for w in range(9): P += L(f'ds_read_b64 {vr(16+2*w,2)}, v8 offset:{w*64}')
    P += L('v_pk_add_f32 v[10:11], v[16:17], v[18:19]')
    for w in range(2, 9): P += L(f'v_pk_add_f32 v[10:11], v[10:11], {vr(16+2*w,2)}')
    P += L(f'v_mul_f32 v10, {f2h(1/9)}, v10')
    for w in range(9): P += L(f'v_sub_f32 v{16+2*w}, v{16+2*w}, v10')
    P += L('v_mul_f32 v9, v16, v16')
    for w in range(1, 9): P += L(f'v_fmac_f32 v9, v{16+2*w}, v{16+2*w}')
    P += L(f'v_fmac_f32 v11, {f2h(64.0)}, v9\nv_mov_b32 v9, {f2h(1e-5)}\nv_fmac_f32 v9, {f2h(1/576)}, v11\nv_rsq_f32 v9, v9')
    for j in range(8): P += L(f'v_sub_f32 v{48+j}, v{48+j}, v10')
    for j in range(8): P += L(f'v_mul_f32 v{48+j}, v{48+j}, v9')
    for j in range(8): P += L(f'v_fma_f32 v{48+j}, v{48+j}, v{80+j}, v{72+j}')
    for j in range(4): P += L(f'v_cvt_pk_bf16_f32 v{16+j}, v{48+2*j}, v{49+2*j}')
    P += L('buffer_store_dwordx4 v[16:19], v2, s[36:39], s33 offen') + stamp_out(2, 40) + L('K2_END:\ns_endpgm')
    resolve([P])
    return 'ln2_kernel', text(P), dict(grid=256, block=576, lds=1024, vgpr=96, acc=96)
def k4(opt):
    P = red_head(WS_SLAB2, 'K4_END') + srd(8, 6, 2048*1152)
    P += L(f'buffer_load_dwordx4 v[12:15], v5, s[36:39], s34 offen\ns_mov_b32 s35, {WS_MOD + 5*2304}') + prm(64, 0)
    P += red_sum() + unpack(56, 12)
    for j in range(8): P += L(f'v_mul_f32 v{64+j}, {f2h(1/LOG2E)}, v{64+j}')
    for j in range(4): P += L(f'v_pk_fma_f32 {vr(48+2*j,2)}, {vr(48+2*j,2)}, {vr(64+2*j,2)}, {vr(56+2*j,2)}')
    for j in range(4): P += L(f'v_cvt_pk_bf16_f32 v{12+j}, v{48+2*j}, v{49+2*j}')
    P += L('buffer_store_dwordx4 v[12:15], v3, s[8:11], s32 offen') + stamp_out(4, 40) + L('K4_END:\ns_endpgm')
    resolve([P])
    return 'out_kernel', text(P), dict(grid=256, block=576, lds=0, vgpr=96, acc=96)
```

```python
from gen1 import *
S_WG, S_WD, S_C, S_H2, S_HM = 50, 51, 52, 53, 54
V_DC = 192; V_TC = 241; V_HW0 = 242; V_HC0 = 244
def sigm(r): return [I(f'v_exp_f32 v{r}, -v{r}'), I(f'v_add_f32 v{r}, 1.0, v{r}'), I(f'v_rcp_f32 v{r}, v{r}')]
def place_sig(tl, regs, p0, p1):
    st = (p1 - p0) / len(regs)
    for n, r in enumerate(regs):
        e, a, c = sigm(r); p = p0 + n * st
        tl.at(p, e); tl.at(p + st * 0.55, a); tl.at(p + st * 1.5, c)
def k3(opt):
    stmod = opt.get('stmod', '')
    P = L(f'''s_cmp_ge_u32 s2, 256
s_cbranch_scc1 K3_END
s_load_dwordx4 s[4:7], s[0:1], 48
s_load_dwordx2 s[12:13], s[0:1], 64
s_load_dwordx2 s[14:15], s[0:1], 104''')
    P += stamp(14, True) + stamp(0) + common_addr(9216)
    P += L(f'''s_lshr_b32 s45, s{S_W}, 1
s_and_b32 s46, s{S_W}, 1
v_lshrrev_b32 v2, 3, v1
v_bfe_u32 v3, v1, 4, 1
s_lshl_b32 s47, s45, 1
v_or_b32 v3, s47, v3
v_lshlrev_b32 v3, 1, v3
v_and_b32 v4, 7, v1
v_xor_b32 v4, v4, v3
v_lshlrev_b32 v4, 4, v4
v_mul_u32_u24 v5, 9216, v2
v_add_u32 v{V_DC}, v5, v4
v_add_u32 v{V_DC+1}, {16*9216-1024}, v{V_DC}
v_add_u32 v{V_DC+2}, {2*(16*9216-1024)}, v{V_DC}
v_add_u32 v{V_DC+3}, {3*(16*9216-1024)}, v{V_DC}
s_mul_i32 s{S_WG}, s{S_SL}, 1152
s_mul_i32 s{S_C}, s46, {8*9216}
s_add_u32 s{S_C}, s{S_C}, s{S_WG}
s_add_u32 s{S_C}, s{S_C}, 1024
s_lshl_b32 s47, s{S_W}, 7
s_add_u32 s{S_WG}, s{S_WG}, s47
s_mul_i32 s{S_WD}, s{S_SL}, {576*1152}
s_add_u32 s{S_WD}, s{S_WD}, s47
s_lshl_b32 s{S_HM}, s{S_W}, 11
s_mul_i32 s{S_H2}, s{S_RB}, {SLAB}
s_add_u32 s{S_H2}, s{S_H2}, s{S_HM}
s_add_u32 s{S_H2}, s{S_H2}, {WS_H2}''')
    P += srd(16, 4, 576*9216) + srd(20, 6, 576*9216) + srd(32, 12, 4608*1152) + srd(36, 14, WS_BYTES)
    P += L(f's_cmp_eq_u32 s45, 0\ns_cselect_b32 s24, s4, s6\ns_cselect_b32 s25, s5, s7\ns_mov_b32 s26, {576*9216}\ns_mov_b32 s27, 0x20000')
    st = Stream()
    uc = st.add(18, 24, S_C, 64*9216, 0, V_DC)
    ug0 = st.add(36, 16, S_WG, 32*9216, 0, V_DA); uu0 = st.add(36, 20, S_WG, 32*9216, 0, V_DA)
    ug1 = st.add(36, 16, S_WG, 32*9216, 512, V_DA); uu1 = st.add(36, 20, S_WG, 32*9216, 512, V_DA)
    ud = st.add(36, 32, S_WD, 32*1152, 0, V_DB); st.add(36, 32, S_WD, 32*1152, 512, V_DB)
    def h2dma(g):
        return [I(f's_add_u32 m0, s{S_HM}, {g*8192}'), I(f's_add_u32 s{S_OFF}, s{S_H2}, {g*8192}')] + \
               [I(f'buffer_load_dwordx4 v{V_L16}, s[36:39], s{S_OFF} offen offset:{j*1024} lds', prod=('h', g)) for j in range(2)]
    for g in range(9): P += h2dma(g) + (st.issue(g) if g < RU // 2 else [])
    P += L(f'''v_bfe_u32 v2, v1, 2, 2
v_bfe_u32 v3, v1, 4, 1
v_lshrrev_b32 v4, 1, v2
v_lshl_or_b32 v4, v3, 1, v4
v_xor_b32 v4, s{S_W}, v4
v_lshl_add_u32 v4, v4, 5, v9
v_lshl_add_u32 v4, v2, 7, v4
v_lshl_add_u32 v3, v3, 1, v7
v_mul_u32_u24 v3, {RING}, v3
v_add_u32 v4, v4, v3
v_add_u32 v{V_TC}, {R1}, v4''')
    P += out_sregs(S_ST, S_L8, WS_SLAB2, 576*1152)
    P += L(f'''s_lshl_b32 s47, s{S_W}, 13
v_add_u32 v{V_HW0}, s47, v{V_B0}
v_add_u32 v{V_HW0+1}, s47, v{V_B1}
v_add_u32 v{V_HC0}, s{S_HM}, v{V_B2}
v_add_u32 v{V_HC0+1}, s{S_HM}, v{V_B3}''')
    tl = TL(); ar_ = ARing()
    for k in range(36):
        g = k // 4; base = tl.n; bp = max(-1, 8 * g - 3 + 0.05)
        if k % 4 == 0:
            tl.at(bp, [WAIT(('u', 2*g), ('u', 2*g+1), ('h', g), 'LG0'), I('s_barrier')] + (stamp(1) if g == 0 else []))
            if g: st.done[2*g - 1] = bp
        r = ar_.nxt()
        rd = trpair(vr, r, V_TC, (g % (RU // 2)) * 4096 + (k % 4) * 1024, 512)
        p = max(bp + 0.1 + 0.01 * (k % 4), base - 4 + 0.3)
        tl.at(p, [jit_frag(k, k, 0)] + rd + [jit_frag(k, k, 1)])
        for b in range(2):
            a = vr(Y + 16 * b, 16)
            tl.mf(f'{MF} {a}, {vr(r)}, {breg(k, b)}, {a if k else 0}')
    g0 = gemm_pass(tl, st, ug0, 36, X, ar_)
    tl.at(g0 - 0.95, [WAIT('LG0'), I('s_barrier')] + stamp(2)); st.done[17] = g0 - 0.95
    place_sig(tl, [Y + 16*b + j for b in range(2) for j in range(8)], g0 + 3.4, g0 + 35.4)
    o = []
    for b in range(2):
        a = Y + 16 * b
        o += L('\n'.join(f'v_mul_f32 v{a+j}, v{a+j}, v{a+8+j}' for j in range(8))) + pack_inplace(a)[0] + L(f'ds_write_b128 v{V_HC0+b}, {vr(a)}')
    tl.spread(g0 + 40.4, g0 + 66.4, o)
    D = 4
    def glu(e, off):
        for t in range(2):
            m = L('\n'.join(f'v_mul_f32 v{Y+32*t+j}, v{X+32*t+j}, v{Y+32*t+j}' for j in range(32)))
            p = e - 2*D + 2*D*t
            tl.spread(p + 1.4, p + 2*D - 0.05, m)
        o = []
        for t in range(2):
            for b in range(2):
                a = Y + 16 * (2*t + b)
                for oc in range(2): o += pack_inplace(a)[oc] + [I(f'ds_write_b128 v{V_HW0+b}, {vr(a+8*oc)} offset:{off + t*4096 + oc*2048}', prod='hh')]
        tl.spread(e + 2*D + 0.4, e + 2*D + 30.4, o)
    u0 = gemm_pass(tl, st, uu0, 36, Y, ar_, tail=D)
    place_sig(tl, range(X, X + 64), u0 + 2.4, u0 + 126.4)
    g1 = gemm_pass(tl, st, ug1, 36, X, ar_, head=D)
    glu(g1, 0)
    u1 = gemm_pass(tl, st, uu1, 36, Y, ar_, tail=D)
    tl.at(u1 - 0.9, [WAIT('hh'), I('s_barrier')])
    place_sig(tl, range(X, X + 64), u1 + 2.4, u1 + 126.4)
    a0 = tl.n
    glu(a0, 32768)
    tl.at(a0 + 64 - 8.9, [WAIT('hh'), I('s_barrier')])
    tl.at(u0 - 0.5, stamp(3)); tl.at(g1 - 0.5, stamp(4)); tl.at(u1 - 0.5, stamp(5)); tl.at(a0 - 0.5, stamp(6))
    proj_out(tl, st, ud, 36, jit_frag, S_L8, 32, S_ST, stmod, head=D, ar_=ar_)
    st.place(tl, RU // 2, len(st.groups))
    seq = P + tl.seq() + stamp_out(3, S_W) + [I('K3_END:'), I('s_endpgm')]
    resolve([seq])
    if opt.get('load'): print(tl.load())
    return 'ffn_kernel', text(seq), dict(grid=256, block=256, lds=163840, vgpr=512, acc=256)
```

```python
import sys
sys.path.insert(0, 'dev')
from gen1 import *
from gen2 import *
from gen3 import *
KD = """.section .rodata,"a"
.p2align 6
.amdhsa_kernel {name}
  .amdhsa_next_free_vgpr {vgpr}
  .amdhsa_next_free_sgpr 102
  .amdhsa_accum_offset {acc}
  .amdhsa_group_segment_fixed_size 0
  .amdhsa_kernarg_size 112
  .amdhsa_user_sgpr_count 2
  .amdhsa_user_sgpr_kernarg_segment_ptr 1
  .amdhsa_system_sgpr_workgroup_id_x 1
.end_amdhsa_kernel
"""
def make(opt={}, ks=None):
    PROF[0] = int(opt.get('prof', 0))
    ks = ks or [k0(opt), k1(opt), k2(opt), k3(opt), k4(opt)]
    o = '; adaLN + sliding-window GQA attention + gated GLU block, generated by dev/gen.py\n'
    for n, t, d in ks: o += f"; @launch kernel={n} grid=({d['grid']},1,1) block=({d['block']},1,1) lds={d['lds']}\n"
    o += '.amdgcn_target "amdgcn-amd-amdhsa--gfx950"\n.text\n'
    seen = set()
    for n, t, d in ks:
        if n in seen: continue
        seen.add(n); o += f'.globl {n}\n.p2align 8\n.type {n},@function\n{n}:\n{t}\n'
    seen = set()
    for n, t, d in ks:
        if n in seen: continue
        seen.add(n); o += KD.format(name=n, vgpr=d['vgpr'], acc=d['acc'])
    return o
if __name__ == '__main__':
    opt = dict(a.split('=') for a in sys.argv[2:])
    out = sys.argv[1] if len(sys.argv) > 1 else f'cdna_kernels/{NAME}.s'
    open(out, 'w').write(make(opt))
```
